```python
import torch

def _softmax(x, axis=-1):
    return torch.softmax(x, dim=axis)
def _gelu(x):
    return torch.nn.functional.gelu(x, approximate="tanh")
def _silu(x):
    return torch.nn.functional.silu(x)
def _sigmoid(x):
    return torch.sigmoid(x)
def _layernorm(x, axis=-1, eps=1e-5):
    m = x.mean(dim=axis, keepdim=True)
    v = x.var(dim=axis, keepdim=True, unbiased=False)
    return (x - m) / torch.sqrt(v + eps)
def _scatter_add(tgt, idx, src, axis=0):
    return tgt.clone().index_add_(axis, idx, src)
def _segment_sum(src, seg, n):
    out = torch.zeros((n,) + src.shape[1:], dtype=src.dtype)
    return out.index_add_(0, seg, src)
def _pad(x, pw):
    flat = tuple(v for pair in reversed(pw) for v in pair)
    return torch.nn.functional.pad(x, flat)

kernel_name = 'standalone__modern_conv_block_slak__vision'

def setup_inputs():

    _w = (lambda a: (lambda t: t.to(torch.bfloat16) if t.is_floating_point() else t)(torch.as_tensor(a)))
    H = W = 224
    C = 192
    K = 3
    return {
        "x": _w((lambda *s: torch.randn(*s, dtype=torch.bfloat16) * 0.05)(1, H, W, C)),
        "dw": _w((lambda *s: torch.randn(*s, dtype=torch.bfloat16) * 0.05)(K, K, C)),
        "w1": _w((lambda *s: torch.randn(*s, dtype=torch.bfloat16) * 0.05)(C, 4 * C)),
        "w2": _w((lambda *s: torch.randn(*s, dtype=torch.bfloat16) * 0.05)(4 * C, C)),
        "grn_g": _w((lambda *s: torch.randn(*s, dtype=torch.bfloat16) * 0.05)(4 * C)),
        "grn_b": _w((lambda *s: torch.randn(*s, dtype=torch.bfloat16) * 0.05)(4 * C)),
    }

def reference(x, dw, w1, w2, grn_g, grn_b):
    B, H, W, C = x.shape
    K = dw.shape[0]
    pad = K // 2
    xp = _pad(x, ((0,0),(pad,pad),(pad,pad),(0,0)))
    out = torch.zeros_like(x)
    for i in range(K):
        for j in range(K):
            out = out + xp[:, i:i+H, j:j+W, :] * dw[i, j][None, None, None, :]
    h = _layernorm(out, axis=-1)
    h = _gelu(h @ w1)
    gx = torch.sqrt((h * h).sum(axis=(1, 2), keepdims=True) + 1e-6)
    nx = gx / (gx.mean(axis=-1, keepdims=True) + 1e-6)
    h = grn_g[None, None, None, :] * (h * nx) + grn_b[None, None, None, :] + h
    return x + h @ w2
```

```python
import re

TRANS = ("v_exp_f32", "v_rcp_f32", "v_rsq_f32", "v_sqrt_f32", "v_log_f32", "v_sin_f32", "v_cos_f32")

_rng = re.compile(r"^([vas])\[(\d+):(\d+)\]$")
_one = re.compile(r"^([vas])(\d+)$")


def regs_of(op):
    op = op.strip()
    if op.startswith("-"):
        op = op[1:]
    if op.startswith("abs(") or op.startswith("|"):
        op = op.strip("|").replace("abs(", "").rstrip(")")
    m = _rng.match(op)
    if m:
        return [(m.group(1), i) for i in range(int(m.group(2)), int(m.group(3)) + 1)]
    m = _one.match(op)
    if m:
        return [(m.group(1), int(m.group(2)))]
    if op == "vcc":
        return [("s", "vcc")]
    if op == "exec":
        return [("s", "exec")]
    if op == "m0":
        return [("s", "m0")]
    return []


def split_ops(rest):
    ops, depth, cur = [], 0, ""
    for ch in rest:
        if ch == "[":
            depth += 1
        elif ch == "]":
            depth -= 1
        if ch == "," and depth == 0:
            ops.append(cur.strip())
            cur = ""
        else:
            cur += ch
    if cur.strip():
        ops.append(cur.strip())
    mods = ""
    if ops:
        last = ops[-1]
        depth = 0
        for i, ch in enumerate(last):
            if ch == "[":
                depth += 1
            elif ch == "]":
                depth -= 1
            elif ch == " " and depth == 0:
                mods = last[i + 1:].strip()
                ops[-1] = last[:i].strip()
                break
    return ops, mods


class Ins:
    __slots__ = ("text", "op", "reads", "writes", "cls", "passes", "tok", "needs", "ops", "mods", "label", "flush")

    def __init__(self, text):
        self.text = text
        self.tok = None
        self.needs = ()
        self.passes = 0
        self.label = False
        self.flush = False
        self.reads, self.writes = [], []
        self.ops, self.mods = [], ""
        t = text.strip()
        if t.endswith(":"):
            self.op, self.cls, self.label = t, "label", True
            return
        if t.startswith(".") or t.startswith(";"):
            self.op, self.cls = t, "directive"
            return
        parts = t.split(None, 1)
        op = parts[0]
        self.op = op
        ops, mods = split_ops(parts[1]) if len(parts) > 1 else ([], "")
        self.ops, self.mods = ops, mods
        R = lambda lst: [r for o in lst for r in regs_of(o)]
        if op.startswith("v_mfma"):
            self.cls = "mfma"
            self.passes = 8 if "32x32" in op else 4
            self.writes, self.reads = R(ops[:1]), R(ops[1:])
        elif op.startswith("v_permlane"):
            self.cls = "valu"
            self.writes = self.reads = R(ops)
        elif op.startswith("v_cmp"):
            self.cls = "valu"
            self.writes, self.reads = R(ops[:1]), R(ops[1:])
        elif op.startswith("v_"):
            self.cls = "trans" if any(op.startswith(x) for x in TRANS) else "valu"
            self.writes, self.reads = R(ops[:1]), R(ops[1:])
            if op.startswith("v_fmac") or op.startswith("v_mac"):
                self.reads = self.reads + self.writes
            if "_dpp" in op or "row_" in mods or "quad_perm" in mods:
                if "bank_mask:0xf" not in mods or "row_mask:0xf" not in mods:
                    self.reads = self.reads + self.writes
        elif op.startswith("ds_read") or op.startswith("ds_bpermute") or op.startswith("ds_swizzle"):
            self.cls = "ds"
            self.writes, self.reads = R(ops[:1]), R(ops[1:])
        elif op.startswith("ds_"):
            self.cls = "ds"
            self.reads = R(ops)
        elif op.startswith("buffer_load") or op.startswith("global_load"):
            self.cls = "vmem"
            if " lds" in (" " + mods):
                self.reads = R(ops) + [("s", "m0")]
            else:
                self.writes, self.reads = R(ops[:1]), R(ops[1:])
        elif op.startswith("buffer_store") or op.startswith("global_store") or op.startswith("buffer_atomic") or op.startswith("global_atomic"):
            self.cls = "vmem"
            self.reads = R(ops)
            if "atomic" in op and "sc0" in mods:
                self.writes = R(ops[:1])
        elif op.startswith("s_load") or op.startswith("s_memtime") or op.startswith("s_memrealtime"):
            self.cls = "smem"
            self.writes, self.reads = R(ops[:1]), R(ops[1:])
        elif op in ("s_waitcnt", "s_nop", "s_barrier", "s_endpgm", "s_setprio", "s_sleep", "s_branch") or op.startswith("s_cbranch"):
            self.cls = "ctl"
            if op == "s_cbranch_vccnz" or op == "s_cbranch_vccz":
                self.reads = [("s", "vcc")]
            if op.startswith("s_cbranch_scc"):
                self.reads = [("s", "scc")]
        elif op.startswith("s_cmp") or op.startswith("s_bitcmp"):
            self.cls = "salu"
            self.reads, self.writes = R(ops), [("s", "scc")]
        elif op.startswith("s_"):
            self.cls = "salu"
            self.writes, self.reads = R(ops[:1]), R(ops[1:])
            if op.startswith("s_cselect") or op.startswith("s_addc") or op.startswith("s_subb"):
                self.reads = self.reads + [("s", "scc")]
            if op.endswith("saveexec_b64"):
                self.writes = self.writes + [("s", "exec")]
        else:
            raise ValueError("unknown instruction: " + text)


class Asm:
    def __init__(self):
        self.ins = []
        self.ntok = 0

    def __call__(self, text, tok=False, needs=()):
        out = None
        for line in text.split("\n"):
            line = line.split(";")[0].strip() if not line.strip().startswith(";") else ""
            if not line:
                continue
            i = Ins(line)
            if needs:
                i.needs = tuple(needs)
                needs = ()
            if tok:
                self.ntok += 1
                i.tok = self.ntok
                out = i.tok
            self.ins.append(i)
        return out

    def need(self, toks=(), regs=()):
        i = Ins("; need")
        i.cls = "pseudo"
        i.needs = tuple(toks)
        i.reads = [r for o in regs for r in regs_of(o)]
        self.ins.append(i)

    def flush(self, vm=False, lgkm=False):
        w = []
        if vm:
            w.append("vmcnt(0)")
        if lgkm:
            w.append("lgkmcnt(0)")
        i = Ins("s_waitcnt " + " ".join(w))
        i.flush = (vm, lgkm)
        self.ins.append(i)

    def insert_waits(self):
        out = []
        lq, vq = [], []
        stats = dict(lgkm=0, vm=0)

        def need_idx(q, regs, toks):
            idx = -1
            for k, e in enumerate(q):
                if (e[0] & regs) or (e[1] is not None and e[1] in toks):
                    idx = k
            return idx

        done_toks = set()
        for i in self.ins:
            if i.cls in ("label", "directive"):
                out.append(i)
                continue
            if i.flush:
                if i.flush[0]:
                    done_toks.update(e[1] for e in vq)
                    vq = []
                if i.flush[1]:
                    done_toks.update(e[1] for e in lq)
                    lq = []
                out.append(i)
                continue
            regs = set(i.reads) | set(i.writes)
            toks = set(i.needs)
            li, vi = need_idx(lq, regs, toks), need_idx(vq, regs, toks)
            w = []
            if vi >= 0:
                n = len(vq) - vi - 1
                n = min(n, 63)
                cut = len(vq) - n
                done_toks.update(e[1] for e in vq[:cut])
                vq = vq[cut:]
                w.append("vmcnt(%d)" % n)
                stats["vm"] += 1
            if li >= 0:
                if any(e[2] for e in lq):
                    n = 0
                else:
                    n = min(len(lq) - li - 1, 15)
                cut = len(lq) - n
                done_toks.update(e[1] for e in lq[:cut])
                lq = lq[cut:]
                w.append("lgkmcnt(%d)" % n)
                stats["lgkm"] += 1
            for t in toks:
                if t not in done_toks and not any(e[1] == t for e in lq + vq):
                    raise ValueError("token %s needed before it was issued (%s)" % (t, i.text))
            if w:
                out.append(Ins("s_waitcnt " + " ".join(w)))
            if i.cls == "pseudo":
                continue
            out.append(i)
            if i.cls == "ds":
                lq.append((set(i.writes), i.tok, False))
            elif i.cls == "smem":
                lq.append((set(i.writes), i.tok, True))
            elif i.cls == "vmem":
                vq.append((set(i.writes), i.tok, False))
        self.ins = out
        return stats

    def insert_nops(self):
        out = []
        pos = 0
        lastw = {}
        lastc = {}
        laststore = {}
        nnop = 0
        m0pos = -100
        notes = {}
        for i in self.ins:
            if i.cls in ("label", "directive", "pseudo"):
                out.append(i)
                continue
            need = 0
            why = ""

            def req(p, dist, reason):
                nonlocal need, why
                d = dist - (pos - p - 1)
                if d > need:
                    need, why = d, reason

            isvalu = i.cls in ("valu", "trans")
            if i.cls == "mfma":
                srcC = regs_of(i.ops[3])
                srcAB = regs_of(i.ops[1]) + regs_of(i.ops[2])
                for r in srcAB + srcC:
                    w = lastw.get(r)
                    if not w:
                        continue
                    if w[1] in ("valu", "trans"):
                        req(w[0], 2, "valu->mfma")
                    elif w[1] == "mfma":
                        if r in srcAB:
                            req(w[0], 12 if w[2] == 8 else 8, "mfma->mfmaAB")
                        else:
                            same = (w[3].ops[0] == i.ops[3]) and w[2] == i.passes
                            if not same:
                                req(w[0], 10 if w[2] == 8 else 6, "mfma->mfmaC")
                for r in i.writes:
                    w = lastw.get(r)
                    if w and w[1] == "mfma" and r not in srcC:
                        req(w[0], 10 if w[2] == 8 else 6, "mfma->mfma WAW")
            else:
                for r in list(i.reads) + list(i.writes):
                    w = lastw.get(r)
                    if w and w[1] == "mfma" and i.cls in ("valu", "trans", "ds", "vmem"):
                        req(w[0], 12 if w[2] == 8 else 8, "mfma->" + i.cls)
                if isvalu:
                    for r in i.writes:
                        c = lastc.get(r)
                        if c:
                            req(c[0], 7 if c[1] == 8 else 3, "mfmaC WAR")
                        s = laststore.get(r)
                        if s is not None:
                            req(s, 2, "store data WAR")
                    isdpp = "_dpp" in i.op or i.op.startswith("v_permlane")
                    for r in i.reads:
                        w = lastw.get(r)
                        if not w:
                            continue
                        if w[1] == "trans" and i.cls == "valu":
                            req(w[0], 1, "trans->valu")
                        if w[1] in ("valu", "trans") and r[0] == "v":
                            if isdpp:
                                req(w[0], 2, "valu->dpp")
                            if i.op.startswith("v_readfirstlane") or i.op.startswith("v_readlane"):
                                req(w[0], 1, "valu->readlane")
                        if w[1] in ("valu", "trans") and r[0] == "s":
                            req(w[0], 2, "valu sgpr->valu")
                if i.cls == "vmem":
                    for r in i.reads:
                        w = lastw.get(r)
                        if w and w[1] in ("valu", "trans") and r[0] == "s":
                            req(w[0], 5, "valu sgpr->vmem")
                        if r == ("s", "m0") and w and w[1] == "salu":
                            req(w[0], 1, "m0->dma")
                if i.cls in ("salu", "ctl"):
                    for r in i.reads:
                        w = lastw.get(r)
                        if w and w[1] in ("valu", "trans") and r[0] == "s":
                            req(w[0], 4 if r != ("s", "vcc") else 5, "valu sgpr->salu")
            if need > 0:
                nnop += need
                notes[why] = notes.get(why, 0) + need
                k = need
                while k > 0:
                    n = min(k, 16)
                    out.append(Ins("s_nop %d" % (n - 1)))
                    pos += n
                    k -= n
            out.append(i)
            if i.cls == "mfma":
                for r in regs_of(i.ops[3]):
                    lastc[r] = (pos, i.passes)
            for r in i.writes:
                lastw[r] = (pos, i.cls, i.passes, i)
            if i.cls == "vmem" and ("store" in i.op) and ("x3" in i.op or "x4" in i.op):
                for r in regs_of(i.ops[0]):
                    laststore[r] = pos
            if i.op == "s_nop":
                pos += int(i.ops[0]) + 1
            else:
                pos += 1
        self.ins = out
        return nnop, notes

    def text(self):
        lines = []
        for i in self.ins:
            if i.cls == "pseudo":
                continue
            lines.append(i.text if (i.label or i.cls == "directive") else " " + i.text)
        return "\n".join(lines) + "\n"

    def count(self):
        c = {}
        for i in self.ins:
            c[i.cls] = c.get(i.cls, 0) + 1
        return c
```

```python
import math, sys, os, argparse
from asmlib import Asm, Ins

KNAME = "standalone__modern_conv_block_slak__vision_kernel"

C0 = -2.0 * math.sqrt(2.0 / math.pi) * math.log2(math.e)
C1 = C0 * 0.044715
ALPHA = -((-C1) ** (1.0 / 3.0))
C0P = C0 / ALPHA
import struct
def fbits(x): return struct.unpack("<I", struct.pack("<f", x))[0]
def fhex(x): return "0x%08x" % fbits(x)

BIG = 0x40000000
L_X = 0
L_LN = 98304
L_LN5 = 49152
L_E = 61440
L_W1 = 0
L_SUMS = 73728
L_ST = 159744
L_BV = 161792
L_PART = 98304
L_TOT = 77824
L_DIAG = 81920
L_ZERO = 95232
LDS_SIZE = 163840
W_INBOX = 0
W_TOT = 0x100000
W_LNE = 0x101000
W_HE = 0x180000
W_W2T = 0x380000
W_STAMP = 0xf00000
W_DUMP = 0x1000000
W_DUMP2 = 0x6000000

sW, sJ, sG = "s3", "s4", "s5"
SX, SW1, SW2, SOUT, SWS, SDW, SGG, SGB, SDBG = ("s[%d:%d]" % (b, b + 3) for b in range(8, 44, 4))
sY0, sX0, sPY, sPX = "s44", "s45", "s46", "s47"
sC0 = "s[50:51]"
def srd(name): return name

vB0, vB1, vTR, vW1g, vSrow, vT = "v2", "v3", "v4", "v5", "v6", "v7"
XB = [8, 24, 40]
ZB = [56, 72]
SB = 88
HV0 = 104
NHA = 19
A_A = 152
A_B = 200

def vr(b, n=1): return "v%d" % b if n == 1 else "v[%d:%d]" % (b, b + n - 1)
def ar(b, n=1): return "a%d" % b if n == 1 else "a[%d:%d]" % (b, b + n - 1)
def hreg(u, off=0, n=8):
    if u < NHA:
        return ar(8 * u + off, n)
    return vr(HV0 + 8 * (u - NHA) + off, n)


class Gen:
    def __init__(self, opt):
        self.o = opt
        self.a = Asm()

    def stamp(self, idx):
        if not self.o.stamps:
            return
        a = self.a
        a.flush(lgkm=True)
        a("s_memtime s[90:91]")
        a.flush(lgkm=True)
        a("s_sub_u32 s%d, s90, s92" % (64 + idx))
        self.nstamp = max(getattr(self, "nstamp", 0), idx + 1)

    def write_stamps(self):
        if not self.o.stamps:
            return
        a = self.a
        a("s_lshl_b32 s6, s2, 2")
        a("s_add_u32 s6, s6, %s" % sW)
        a("s_lshl_b32 s6, s6, 7")
        a("s_add_u32 s6, s6, 0x%x" % W_STAMP)
        a("v_mov_b32 v241, 0")
        for idx in range(self.nstamp):
            a("v_mov_b32 v240, s%d" % (64 + idx))
            a("buffer_store_dword v240, v241, %s, s6 offen offset:%d" % (SWS, 4 * idx))
            a.flush(vm=True)

    def entry(self):
        a = self.a
        a("s_cmp_ge_u32 s2, 256")
        a("s_cbranch_scc1 L_end")
        a("s_load_dwordx16 s[64:79], s[0:1], 0")
        a("s_load_dwordx2 s[80:81], s[0:1], 64")
        if self.o.stamps:
            a("s_memtime s[92:93]")
        a("v_lshrrev_b32 v7, 6, v0")
        a("v_and_b32 v1, 63, v0")
        a("v_readfirstlane_b32 %s, v7" % sW)
        a("s_and_b32 %s, s2, 7" % sJ)
        a("s_lshr_b32 %s, s2, 3" % sG)
        a("s_lshr_b32 %s, s2, 4" % sPY)
        a("s_and_b32 %s, s2, 15" % sPX)
        a("s_mul_i32 %s, %s, 14" % (sY0, sPY))
        a("s_mul_i32 %s, %s, 14" % (sX0, sPX))
        a("s_mov_b32 s50, %s" % fhex(C0P))
        a("s_mov_b32 s51, %s" % fhex(C0P))

    def srds(self):
        a = self.a
        m = [(8, 64, 19267584), (28, 66, 3456), (12, 68, 294912), (16, 70, 294912), (32, 72, 1536),
             (36, 74, 1536), (20, 76, 19267584), (40, 78, 256), (24, 80, 268435456)]
        a.need(regs=["s[64:81]"])
        for d, s, n in m:
            a("s_mov_b32 s%d, s%d" % (d, s))
            a("s_mov_b32 s%d, s%d" % (d + 1, s + 1))
            a("s_mov_b32 s%d, 0x%x" % (d + 2, n))
            a("s_mov_b32 s%d, 0x20000" % (d + 3))

    def phase0(self):
        a = self.a
        o = self.o
        AF, ACC = 104, 176
        DW, MULT = 8, 26
        XO = 30
        T0 = 33
        CB = 224
        Q1, Q2 = 44, 48
        RS = 52
        OUTD = 60
        vPl, vLW, vSTw, vSTr = 72, 73, 74, 75
        lane = "v1"
        t0, t1, t2, t3, t4 = "v96", "v97", "v98", "v99", "v100"
        a("s_and_b32 s62, %s, 1" % sW)
        a("s_lshr_b32 s63, %s, 1" % sW)
        a("s_lshl_b32 s7, s62, 3")
        a("s_cmp_eq_u32 %s, 0" % sPX)
        a("s_cselect_b32 s54, 0, 99")
        a("s_cmp_eq_u32 %s, 15" % sPX)
        a("s_cselect_b32 s55, 15, 99")
        for t in range(3):
            a("v_add_u32 %s, %d, %s" % (t0, 64 * t, lane))
            a("v_mul_u32_u24 %s, 171, %s" % (t1, t0))
            a("v_lshrrev_b32 %s, 12, %s" % (t1, t1))
            a("v_mul_u32_u24 %s, 24, %s" % (t2, t1))
            a("v_sub_u32 %s, %s, %s" % (t2, t0, t2))
            a("v_add_u32 %s, s7, %s" % (t1, t1))
            a("v_lshrrev_b32 %s, 1, %s" % (t3, t1))
            a("v_xor_b32 %s, %s, %s" % (t3, t3, t2))
            a("v_and_b32 %s, 7, %s" % (t3, t3))
            a("v_and_b32 %s, 24, %s" % (t2, t2))
            a("v_or_b32 %s, %s, %s" % (t2, t2, t3))
            a("v_lshlrev_b32 %s, 4, %s" % (t2, t2))
            a("v_mul_u32_u24 %s, 384, %s" % (t3, t1))
            a("v_add_u32 %s, %s, %s" % (t2, t2, t3))
            a("v_mov_b32 %s, 0x%x" % (t3, BIG))
            a("v_cmp_eq_u32 vcc, s54, %s" % t1)
            a("v_cmp_eq_u32 s[6:7], s55, %s" % t1) if False else None
            a("v_cndmask_b32 %s, %s, %s, vcc" % (t2, t2, t3))
            a("v_cmp_eq_u32 vcc, s55, %s" % t1)
            a("s_nop 0") if False else None
            a("v_cndmask_b32 %s, %s, %s, vcc" % (vr(XO + t), t2, t3))
        a("v_lshrrev_b32 %s, 4, %s" % (t0, lane))
        a("v_bfe_u32 %s, %s, 2, 1" % (t1, lane))
        a("v_bfe_u32 %s, %s, 3, 1" % (t2, lane))
        a("v_and_b32 %s, 3, %s" % (t3, lane))
        a("v_lshl_add_u32 %s, %s, 2, %s" % (t3, t2, t3))
        a("v_sub_u32 %s, %s, %s" % (t0, t0, t1))
        a("v_mul_u32_u24 %s, 1152, %s" % (t4, t0))
        a("v_lshl_add_u32 %s, %s, 1, %s" % (t4, t3, t4))
        a("s_mul_i32 s6, %s, 96" % sW)
        a("v_add_u32 %s, s6, %s" % (t4, t4))
        a("v_mov_b32 %s, 0x%x" % (t1, BIG))
        a("v_cmp_gt_u32 vcc, 3, %s" % t0)
        a("v_and_b32 %s, 1, %s" % (t2, t3))
        a("v_cndmask_b32 v35, %s, %s, vcc" % (t1, t4))
        a("v_lshlrev_b32 %s, 4, %s" % (t2, t2))
        a("v_mov_b32 %s, 1" % t1)
        a("v_lshlrev_b32 %s, %s, %s" % (t2, t2, t1))
        a("v_lshrrev_b32 %s, 1, %s" % (t3, t3))
        for t in range(4):
            a("v_cmp_eq_u32 vcc, %d, %s" % (t, t3))
            a("v_cndmask_b32 %s, 0, %s, vcc" % (vr(MULT + t), t2))
        a("v_lshlrev_b32 v46, 4, v0")
        a("s_lshl_b32 s6, s2, 12")
        a("s_cmp_lt_u32 s2, 240")
        a("s_cselect_b32 s6, s6, 0x%x" % BIG)
        a("v_add_u32 v46, s6, v46")
        a("v_lshrrev_b32 %s, 3, v0" % t0)
        a("v_lshlrev_b32 %s, 10, %s" % (t0, t0))
        a("v_bfe_u32 %s, v0, 2, 1" % t1)
        a("v_lshl_add_u32 %s, %s, 9, %s" % (t0, t1, t0))
        a("v_and_b32 %s, 3, v0" % t1)
        a("v_lshl_add_u32 %s, %s, 4, %s" % (t0, t1, t0))
        a("s_mul_i32 s6, %s, 12288" % sG)
        a("s_lshl_b32 s7, %s, 6" % sJ)
        a("s_add_u32 s6, s6, s7")
        a("s_add_u32 s6, s6, 0x%x" % W_LNE)
        a("v_add_u32 %s, s6, %s" % (t0, t0))
        a("s_lshl_b32 s6, s2, 4")
        a("s_add_u32 s6, s6, 0x%x" % W_TOT)
        a("s_cmp_lt_u32 s2, 240")
        a("s_cselect_b32 s6, s6, 0x%x" % BIG)
        a("v_mov_b32 %s, s6" % t1)
        a("v_mov_b32 %s, 0x%x" % (t2, BIG))
        a("v_cmp_eq_u32 vcc, 96, v0")
        a("v_cndmask_b32 %s, %s, %s, vcc" % (t1, t2, t1))
        a("v_cmp_gt_u32 vcc, 96, v0")
        a("v_cndmask_b32 v47, %s, %s, vcc" % (t1, t0))
        for i in range(4):
            a("v_mov_b32 v%d, -1" % (48 + i))
        a("s_mul_i32 s6, %s, 224" % sY0)
        a("s_add_u32 s6, s6, %s" % sX0)
        a("s_sub_u32 s6, s6, 225")
        a("s_mul_i32 s7, s63, 224")
        a("s_add_u32 s6, s6, s7")
        a("s_mul_i32 s48, s6, 384")
        a("s_mul_i32 s49, %s, 3072" % sW)
        self.ct_setup()
        self.srds()
        self.stamp(0)
        xtok = {}
        xmod = " nt" if o.xnt else ""

        def xdma_ins(rp):
            G = []
            for t in range(3):
                g = []
                tmp = vr(T0 + (t & 1))
                if t == 0:
                    g.append("s_add_u32 s85, s48, %d" % (rp * 2 * 224 * 384))
                    if rp == 0:
                        g += ["s_cmp_eq_u32 %s, 0" % sPY, "s_cselect_b32 s86, s63, 1", "s_cmp_eq_u32 s86, 0",
                              "s_cselect_b32 s85, 0x%x, s85" % BIG]
                    if rp == 7:
                        g += ["s_cmp_eq_u32 %s, 15" % sPY, "s_cselect_b32 s86, s63, 0", "s_cmp_eq_u32 s86, 1",
                              "s_cselect_b32 s85, 0x%x, s85" % BIG]
                g.append("s_add_u32 m0, s49, %d" % (L_X + rp * 12288 + t * 1024))
                g.append("v_add_u32 %s, s85, %s" % (tmp, vr(XO + t)))
                g.append(("buffer_load_dwordx4 %s, %s, 0 offen%s lds" % (tmp, SX, xmod), (rp, t)))
                G.append(g)
            return G

        def emit_group(g):
            for it in g:
                if isinstance(it, tuple):
                    xtok[it[1]] = a(it[0], tok=True)
                else:
                    a(it)

        tok_init = []
        tok_init.append(a("buffer_store_dwordx4 v[48:51], v46, %s, 0 offen sc1" % SWS, tok=True))
        tok_init.append(a("buffer_store_dwordx4 v[48:51], v47, %s, 0 offen sc1" % SWS, tok=True))
        for rp in (0, 1):
            for g in xdma_ins(rp):
                emit_group(g)
        for c in range(6):
            for dx in range(3):
                a("buffer_load_ushort %s, v35, %s, 0 offen offset:%d" % (vr(DW + 3 * c + dx), SDW, dx * 384 + 16 * c))
        for g in xdma_ins(2):
            emit_group(g)
        if o.prefetch:
            a("s_getpc_b64 s[82:83]")
            a("L_pc0:")
            a("s_sub_u32 s82, s82, L_pc0-%s" % KNAME)
            a("s_subb_u32 s83, s83, 0")
            a("v_lshlrev_b32 %s, 7, v0" % t0)
            for i in range(o.prefetch):
                a("global_load_dword v253, %s, s[82:83]" % t0)
                if i + 1 < o.prefetch:
                    a("v_add_u32 %s, 0x8000, %s" % (t0, t0))
        self.bvec_loads()
        self.w2t_prep_load()
        self.stamp(1)
        a("v_lshrrev_b32 %s, 4, %s" % (t0, lane))
        a("v_and_b32 %s, 15, %s" % (t1, lane))
        a("v_lshrrev_b32 %s, 1, %s" % (t2, t0))
        a("v_mul_u32_u24 %s, 12288, %s" % (t2, t2))
        a("v_and_b32 %s, 1, %s" % (t3, t0))
        a("v_mul_u32_u24 %s, 6144, %s" % (t3, t3))
        a("v_add_u32 %s, %s, %s" % (t2, t2, t3))
        for dx in range(3):
            a("v_add_u32 %s, %d, %s" % (t3, dx, t1))
            a("v_and_b32 %s, 15, %s" % (t3, t3))
            a("v_lshrrev_b32 %s, 1, %s" % (t4, t3))
            a("v_lshlrev_b32 v%d, 4, %s" % (92 + dx, t4))
            a("v_mul_u32_u24 %s, 384, %s" % (t3, t3))
            a("v_add_u32 v%d, %s, %s" % (101 + dx - 6, t3, t2) if False else "v_add_u32 v%d, %s, %s" % (89 + dx, t3, t2))
        for c in range(6):
            a("s_mul_i32 s6, %s, 6" % sW)
            a("s_add_u32 s6, s6, %d" % c)
            a("s_and_b32 s7, s6, 7")
            a("s_lshl_b32 s7, s7, 4")
            a("s_and_b32 s6, s6, 24")
            a("s_lshl_b32 s6, s6, 4")
            for dx in range(3):
                a("v_xor_b32 %s, s7, v%d" % (t3, 92 + dx))
                a("v_add3_u32 %s, %s, v%d, s6" % (vr(CB + 3 * c + dx), t3, 89 + dx))
        a("v_bfe_u32 %s, %s, 4, 1" % (t3, lane))
        a("v_mul_u32_u24 %s, 14, %s" % (t3, t3))
        a("v_add_u32 %s, %s, %s" % (vr(vPl), t3, t1))
        a("v_lshrrev_b32 %s, 5, %s" % (t4, lane))
        a("v_lshlrev_b32 %s, 9, %s" % (t4, t4))
        a("v_lshl_add_u32 %s, %s, 4, %s" % (t4, vr(vPl), t4))
        a("v_add_u32 %s, s49, %s" % (vr(vLW), t4))
        a("s_lshl_b32 s6, %s, 2" % sW)
        a("s_add_u32 s6, s6, %d" % L_ST)
        a("v_lshlrev_b32 %s, 4, %s" % (t4, lane))
        a("v_add_u32 %s, s6, %s" % (vr(vSTw), t4))
        a("v_and_b32 %s, 31, %s" % (t4, lane))
        a("v_lshlrev_b32 %s, 4, %s" % (t4, t4))
        a("v_add_u32 %s, %d, %s" % (vr(vSTr), L_ST, t4))
        a("v_lshlrev_b32 %s, 4, %s" % (t4, lane))
        a("v_add_u32 %s, %d, %s" % (vB1, 12288, t4))
        a("v_add_u32 %s, %d, %s" % (vB0, L_LN, t4))
        a("v_bfe_u32 %s, %s, 2, 3" % (t0, lane))
        a("v_mul_u32_u24 %s, 1536, %s" % (t0, t0))
        a("v_lshrrev_b32 %s, 5, %s" % (t1, lane))
        a("v_lshl_add_u32 %s, %s, 6, %s" % (t0, t1, t0))
        a("v_and_b32 %s, 3, %s" % (t1, lane))
        a("v_lshl_add_u32 %s, %s, 4, %s" % (t0, t1, t0))
        a("s_mul_i32 s6, s62, %d" % (8 * 1536))
        a("v_add_u32 %s, s6, %s" % (vW1g, t0))
        a("v_lshrrev_b32 %s, 5, %s" % (t0, lane))
        a("v_bfe_u32 %s, %s, 2, 2" % (t1, lane))
        a("v_lshl_add_u32 %s, %s, 2, %s" % (t0, t0, t1))
        a("v_lshlrev_b32 %s, 6, %s" % (t0, t0))
        a("v_bfe_u32 %s, %s, 4, 1" % (t1, lane))
        a("v_lshl_add_u32 %s, %s, 5, %s" % (t0, t1, t0))
        a("v_and_b32 %s, 3, %s" % (t1, lane))
        a("v_lshl_add_u32 %s, %s, 3, %s" % (t0, t1, t0))
        a("s_mul_i32 s6, s63, 24576")
        a("s_lshl_b32 s7, s62, 9")
        a("s_add_u32 s6, s6, s7")
        a("s_add_u32 s6, s6, %d" % L_W1)
        a("v_add_u32 %s, s6, %s" % (vTR, t0))
        for c in range(6):
            for dx in range(3):
                f = 3 * c + dx
                for t in range(4):
                    a("v_mul_u32_u24 %s, %s, %s" % (vr(AF + 4 * f + t), vr(DW + f), vr(MULT + t)))

        ring = [0]
        seq = [(c, dx) for c in range(6) for dx in range(3)]
        PD = 5
        slots = {}

        def rd(yp, n):
            c, dx = seq[n]
            s_ = ring[0] % 8
            ring[0] += 1
            slots[(yp, n)] = s_
            yoff = yp if yp < 6 else 5
            a("ds_read_b128 %s, %s offset:%d" % (ar(A_B + 4 * s_, 4), vr(CB + 3 * c + dx), yoff * 12288))

        def conv_pre(yp):
            if yp == 6:
                for i in range(18):
                    a("v_add_u32 %s, 12288, %s" % (vr(CB + i), vr(CB + i)))
            for n in range(PD):
                rd(yp, n)

        def conv_M(yp, groups):
            acc = ACC + 24 * (yp & 1)
            groups = list(groups)
            for n, (c, dx) in enumerate(seq):
                if n % 3 == 0:
                    a.need(regs=[ar(A_B + 4 * slots[(yp, m)], 4) for m in range(n, min(n + 3, 18)) if (yp, m) in slots])
                d = vr(acc + 4 * c, 4)
                a("v_mfma_f32_16x16x32_bf16 %s, %s, %s, %s" % (d, vr(AF + 4 * (3 * c + dx), 4), ar(A_B + 4 * slots[(yp, n)], 4), "0" if dx == 0 else d))
                if n + PD < 18:
                    rd(yp, n + PD)
                if groups and n % 2 == 1:
                    emit_group(groups.pop(0))
            for g in groups:
                emit_group(g)

        def stats(yp):
            acc = ACC + 24 * (yp & 1)
            s1, s2 = 54, 56
            a("v_pk_add_f32 %s, %s, %s" % (vr(s1, 2), vr(acc, 2), vr(acc + 2, 2)))
            a("v_pk_mul_f32 %s, %s, %s" % (vr(s2, 2), vr(acc, 2), vr(acc, 2)))
            a("v_pk_fma_f32 %s, %s, %s, %s" % (vr(s2, 2), vr(acc + 2, 2), vr(acc + 2, 2), vr(s2, 2)))
            for p in range(2, 12):
                a("v_pk_add_f32 %s, %s, %s" % (vr(s1, 2), vr(s1, 2), vr(acc + 2 * p, 2)))
                a("v_pk_fma_f32 %s, %s, %s, %s" % (vr(s2, 2), vr(acc + 2 * p, 2), vr(acc + 2 * p, 2), vr(s2, 2)))
            a("v_add_f32 v54, v54, v55")
            a("v_add_f32 v56, v56, v57")

        def stats_out(yp):
            a("v_permlane32_swap_b32 v54, v56")
            a("v_add_f32 v54, v54, v56")
            return a("ds_write_b32 %s, v54 offset:%d" % (vr(vSTw), (yp & 1) * 1024), tok=True)

        def finish_reads(yp):
            a("ds_read_b128 %s, %s offset:%d" % (vr(Q1, 4), vr(vSTr), (yp & 1) * 1024))
            a("ds_read_b128 %s, %s offset:%d" % (vr(Q2, 4), vr(vSTr), (yp & 1) * 1024 + 512))

        def ln_addr(yp):
            p0 = 28 * yp
            pt_lo = p0 >> 5
            pt_hi = pt_lo + 1
            base = lambda pt: (L_LN + 12288 * pt) if pt < 5 else (L_LN5 if pt == 5 else L_E)
            klo = base(pt_lo) - 512 * pt_lo + 16 * p0
            khi = base(pt_hi) - 512 * pt_hi + 16 * p0
            a("v_cmp_le_u32 vcc, %d, %s" % (32 * pt_hi - p0, vr(vPl)))
            a("v_mov_b32 v58, %d" % khi)
            a("v_mov_b32 v59, %d" % klo)
            a("v_cndmask_b32 v58, v59, v58, vcc")
            a("v_add_u32 v58, v58, %s" % vr(vLW))

        def finishA(yp):
            a("v_add_f32 %s, %s, %s" % (vr(Q1), vr(Q1), vr(Q1 + 1)))
            a("v_add_f32 %s, %s, %s" % (vr(Q2), vr(Q2), vr(Q2 + 1)))
            a("v_add_f32 %s, %s, %s" % (vr(Q1 + 2), vr(Q1 + 2), vr(Q1 + 3)))
            a("v_add_f32 %s, %s, %s" % (vr(Q2 + 2), vr(Q2 + 2), vr(Q2 + 3)))
            a("v_add_f32 %s, %s, %s" % (vr(Q1), vr(Q1), vr(Q1 + 2)))
            a("v_add_f32 %s, %s, %s" % (vr(Q2), vr(Q2), vr(Q2 + 2)))
            a("v_mul_f32 %s, %s, %s" % (vr(Q1), fhex(1.0 / 192), vr(Q1)))
            a("v_mul_f32 %s, %s, %s" % (vr(Q2), fhex(1.0 / 192), vr(Q2)))
            a("v_fma_f32 %s, -%s, %s, %s" % (vr(Q2), vr(Q1), vr(Q1), vr(Q2)))
            a("v_max_f32 %s, 0, %s" % (vr(Q2), vr(Q2)))
            a("v_add_f32 %s, %s, %s" % (vr(Q2), fhex(1e-5), vr(Q2)))
            a("v_rsq_f32 %s, %s" % (vr(Q2), vr(Q2)))
            a("v_sub_f32 %s, 0, %s" % (vr(Q1), vr(Q1)))
            a("v_mul_f32 %s, %s, %s" % (vr(RS), fhex(ALPHA), vr(Q2)))
            a("v_mul_f32 %s, %s, %s" % (vr(RS + 1), vr(Q1), vr(RS)))

        def finishB(yp):
            acc = ACC + 24 * (yp & 1)
            for p in range(12):
                a("v_pk_fma_f32 %s, %s, %s, %s op_sel:[0,0,1] op_sel_hi:[1,0,1]" % (vr(acc + 2 * p, 2), vr(acc + 2 * p, 2), vr(RS, 2), vr(RS, 2)))
            for p in range(12):
                a("v_cvt_pk_bf16_f32 %s, %s, %s" % (vr(OUTD + p), vr(acc + 2 * p), vr(acc + 2 * p + 1)))
            a("s_mov_b64 exec, s[88:89]")
            toks = []
            for u in range(3):
                toks.append(a("ds_write_b128 v58, %s offset:%d" % (vr(OUTD + 4 * u, 4), u * 1024), tok=True))
            a("s_mov_b64 exec, -1")
            return toks

        a("s_mov_b32 s88, 0x3fff3fff")
        a("s_mov_b32 s89, 0x3fff3fff")
        self.stamp(2)
        a.need(toks=[xtok[(1, 2)]] + tok_init, )
        a("s_barrier")
        a("s_cmp_eq_u32 %s, 0" % sW)
        a("s_cselect_b32 s6, 0, 0x%x" % BIG)
        a("v_mov_b32 v58, s6")
        a("v_mov_b32 v59, 1")
        a("s_mov_b64 exec, 1")
        a("buffer_atomic_add v59, v58, %s, 0 offen" % SDBG)
        a("s_mov_b64 exec, -1")
        conv_pre(0)
        w1tok = None
        for yp in range(7):
            if yp in (0, 3, 6):
                self.stamp(3 + yp // 3)
            groups = xdma_ins(yp + 3) if yp + 3 <= 7 else []
            conv_M(yp, groups)
            if yp in (4, 5):
                part = range(6 * (yp - 4), 6 * (yp - 4) + 6)
                w1tok = self.w1_dma(0, part=list(part), setup=(yp == 4))
            if yp == 1:
                self.bvec_compute()
                self.w2t_prep_store()
            if yp > 0:
                finishA(yp - 1)
            stats(yp)
            stats_out(yp)
            if yp > 0:
                finishB(yp - 1)
            if yp + 2 <= 7:
                a.need(toks=[xtok[(yp + 2, 2)]])
            a.flush(lgkm=True)
            a("s_barrier")
            finish_reads(yp)
            if yp < 6:
                conv_pre(yp + 1)
            ln_addr(yp)
        finishA(6)
        finishB(6)
        a.need(toks=[w1tok])
        a.flush(lgkm=True)
        a("s_barrier")
        for j in range(12):
            a("ds_read_b64_tr_b16 %s, %s offset:%d" % (ar(A_A + 4 * j, 2), vTR, j * 2048))
            a("ds_read_b64_tr_b16 %s, %s offset:%d" % (ar(A_A + 4 * j + 2, 2), vTR, j * 2048 + 1024))

    def ct_setup(self):
        a = self.a
        for i in range(6):
            a("s_add_u32 s6, %s, %d" % (sJ, i + 1))
            a("s_cmp_ge_u32 s6, 12")
            a("s_cselect_b32 s7, 12, 0")
            a("s_sub_u32 s6, s6, s7")
            a("s_cmp_ge_u32 s6, 6")
            a("s_cselect_b32 s7, 6, 0")
            a("s_sub_u32 s%d, s6, s7" % (56 + i))

    def w1_dma(self, i, part=None, setup=True):
        a = self.a
        tok = None
        rng = list(range(12)) if part is None else part
        for j in rng:
            if j == rng[0] and setup:
                a("s_lshr_b32 s62, %s, 1" % sW)
                a("s_mul_i32 s63, s62, 24576")
                a("s_mul_i32 s62, s62, 6")
                a("s_add_u32 s62, s62, s%d" % (56 + i))
                a("s_lshl_b32 s62, s62, 7")
                a("s_and_b32 s6, %s, 1" % sW)
                a("s_lshl_b32 s6, s6, 10")
                a("s_add_u32 s63, s63, s6")
                a("s_add_u32 s63, s63, %d" % L_W1)
            a("s_add_u32 m0, s63, %d" % (j * 2048))
            a("s_add_u32 s6, s62, %d" % (j * 16 * 1536))
            tok = a("buffer_load_dwordx4 %s, %s, s6 offen lds" % (vW1g, SW1), tok=True)
        return tok

    def bvec_loads(self):
        a = self.a
        a("v_lshlrev_b32 v78, 3, v0")
        a("s_mul_i32 s6, s2, 1152")
        a("v_add_u32 v78, s6, v78")
        a("v_mov_b32 v79, 0x%x" % BIG)
        a("v_cmp_gt_u32 vcc, 48, v0")
        a("v_cndmask_b32 v78, v79, v78, vcc")
        for i in range(3):
            a("buffer_load_dwordx2 %s, v78, %s, 0 offen offset:%d" % (vr(80 + 2 * i, 2), SW2, 384 * i))
        a("s_mul_i32 s6, s2, 6")
        a("v_mov_b32 v79, s6")
        for i in range(3):
            a("buffer_load_ushort %s, v79, %s, 0 offen offset:%d" % (vr(86 + i), SGB, 2 * i))

    def bvec_compute(self):
        a = self.a
        for i in range(3):
            a("v_lshlrev_b32 %s, 16, %s" % (vr(86 + i), vr(86 + i)))
        for d in range(2):
            for h in range(2):
                o = 90 + 2 * d + h
                for i in range(3):
                    if h == 0:
                        a("v_lshlrev_b32 v94, 16, %s" % vr(80 + 2 * i + d))
                    else:
                        a("v_and_b32 v94, 0xffff0000, %s" % vr(80 + 2 * i + d))
                    if i == 0:
                        a("v_mul_f32 %s, v94, %s" % (vr(o), vr(86)))
                    else:
                        a("v_fmac_f32 %s, v94, %s" % (vr(o), vr(86 + i)))
        a("v_lshlrev_b32 v94, 4, v0")
        a("v_add_u32 v94, %d, v94" % L_BV)
        a("s_cmp_eq_u32 %s, 0" % sW)
        a("s_cselect_b32 s6, -1, 0")
        a("s_cselect_b32 s7, 0xffff, 0")
        a("s_mov_b64 exec, s[6:7]")
        a("ds_write_b128 v94, v[90:93]")
        a("s_mov_b64 exec, -1")


    def phase1_setup(self):
        a = self.a
        lane = "v1"
        a("v_bfe_u32 v240, %s, 3, 1" % lane)
        a("v_bfe_u32 v241, %s, 2, 1" % lane)
        a("v_lshl_add_u32 v240, v241, 1, v240")
        a("v_bfe_u32 v241, %s, 4, 1" % lane)
        a("v_lshl_add_u32 v240, v241, 3, v240")
        a("v_bfe_u32 v241, %s, 1, 1" % lane)
        a("v_lshl_add_u32 v240, v241, 4, v240")
        a("v_lshrrev_b32 v241, 5, %s" % lane)
        a("v_lshl_add_u32 v240, v241, 2, v240")
        a("s_lshr_b32 s6, %s, 1" % sW)
        a("s_mul_i32 s6, s6, 1536")
        a("s_and_b32 s7, %s, 1" % sW)
        a("s_lshl_b32 s7, s7, 7")
        a("s_add_u32 s6, s6, s7")
        a("s_add_u32 s6, s6, %d" % L_SUMS)
        a("v_lshlrev_b32 v240, 2, v240")
        a("v_add_u32 %s, s6, v240" % vSrow)
        a("s_mov_b32 s52, 0xcccccccc")
        a("s_mov_b32 s53, 0xcccccccc")

    def reduce_ops(self, i):
        S = lambda r: vr(SB + r)
        L = []
        for p in range(8):
            L.append("v_add_f32_dpp %s, %s, %s row_ror:8 row_mask:0xf bank_mask:0x3" % (S(2 * p), S(2 * p), S(2 * p)))
        for p in range(8):
            L.append("v_add_f32_dpp %s, %s, %s row_ror:8 row_mask:0xf bank_mask:0xc" % (S(2 * p), S(2 * p + 1), S(2 * p + 1)))
        for p in range(4):
            L.append("v_add_f32_dpp %s, %s, %s row_shl:4 row_mask:0xf bank_mask:0x5" % (S(4 * p), S(4 * p), S(4 * p)))
        for p in range(4):
            L.append("v_add_f32_dpp %s, %s, %s row_shr:4 row_mask:0xf bank_mask:0xa" % (S(4 * p), S(4 * p + 2), S(4 * p + 2)))
        L.append("s_lshl_b32 s6, s%d, 8" % (56 + i))
        L.append("v_add_u32 %s, s6, %s" % (vT, vSrow))
        L.append("v_permlane16_swap_b32 %s, %s" % (S(0), S(4)))
        L.append("v_permlane16_swap_b32 %s, %s" % (S(8), S(12)))
        L.append("v_add_f32 %s, %s, %s" % (S(0), S(0), S(4)))
        L.append("v_add_f32 %s, %s, %s" % (S(8), S(8), S(12)))
        L.append("s_nop 0")
        L.append("v_add_f32_dpp %s, %s, %s quad_perm:[2,3,0,1] row_mask:0xf bank_mask:0xf" % (S(0), S(0), S(0)))
        L.append("v_add_f32_dpp %s, %s, %s quad_perm:[2,3,0,1] row_mask:0xf bank_mask:0xf" % (S(8), S(8), S(8)))
        L.append("v_cndmask_b32 %s, %s, %s, s[52:53]" % (S(0), S(0), S(8)))
        L.append("v_add_f32_dpp %s, %s, %s quad_perm:[1,0,3,2] row_mask:0xf bank_mask:0xf" % (S(1), S(0), S(0)))
        L.append("ds_write_b32 %s, %s" % (vT, S(1)))
        return L

    def phase1(self):
        a = self.a
        o = self.o
        units = []
        for i in range(6):
            if i == 5 and o.useE:
                units.append((i, "E"))
            for pt in range(6):
                units.append((i, pt))
        N = len(units)
        X = lambda k, r=0, n=1: vr(XB[k % 3] + r, n)
        Z = lambda k, r=0, n=1: vr(ZB[k % 2] + r, n)
        first_of_pass = {}
        last_of_pass = {}
        for k, (i, pt) in enumerate(units):
            first_of_pass.setdefault(i, k)
            last_of_pass[i] = k
        PD = 7

        def bsrc(n):
            k, j = divmod(n, 12)
            i, pt = units[k]
            if pt == "E":
                return vB1, L_E - 12288 + j * 1024
            if pt == 5:
                return vB1, L_LN5 - 12288 + j * 1024
            return vB0, pt * 12288 + j * 1024

        def bslot(n): return ar(A_B + 4 * (n % 8), 4)

        def bread(n):
            if n < 12 * N:
                r, off = bsrc(n)
                a("ds_read_b128 %s, %s offset:%d" % (bslot(n), r, off))

        w1tok = {}
        for n in range(PD):
            bread(n)
        for k in range(N + 2):
            Q = []
            ex = ["v_exp_f32 %s, %s" % (Z(k - 1, r), Z(k - 1, r)) for r in range(16)] if 1 <= k <= N else []
            rc = ["v_rcp_f32 %s, %s" % (Z(k - 2, r), Z(k - 2, r)) for r in range(16)] if 2 <= k <= N + 1 else []
            for r in range(16):
                if rc: Q.append(rc[r])
                if ex: Q.append(ex[r])
            red = []
            if k >= 3:
                for i, kl in last_of_pass.items():
                    if kl == k - 3:
                        red = self.reduce_ops(i)
            if k < N:
                i, pt = units[k]
                if k == first_of_pass[i] and i in (1, 3, 5):
                    self.stamp(7 + i // 2)
                pp_ = k - first_of_pass[i]
                if i == 2 and pp_ == 3:
                    self.handshake_load()
                if i == 2 and pp_ == 4:
                    self.handshake_check()
                    self.publish_E_bvec()
                if i == 4 and pp_ == 3 and o.useE:
                    etoks = self.gather_E()
                ntail = 5
                body, tail = Q[:max(len(Q) - ntail, 0)], Q[max(len(Q) - ntail, 0):]
                per = [len(body) * (j + 1) // 12 - len(body) * j // 12 for j in range(12)]
                rper = [len(red) * (j + 1) // 12 - len(red) * j // 12 for j in range(12)]
                bi = ri = 0
                pos_in_pass = k - first_of_pass[i]
                dma = []
                if i < 5 and pos_in_pass in (1, 2):
                    dma = list(range(6 * (pos_in_pass - 1), 6 * pos_in_pass))
                for j in range(12):
                    n = 12 * k + j
                    if n % 3 == 0:
                        a.need(regs=[bslot(m) for m in range(n, n + 3)])
                    if j == 0 and k == last_of_pass[i] and i < 5:
                        a.need(toks=[w1tok[i + 1]] + (etoks if (i == 4 and o.useE) else []))
                        a("s_barrier")
                    if j == 0 and pos_in_pass == 1:
                        a("s_barrier")
                    a("v_mfma_f32_32x32x16_bf16 %s, %s, %s, %s" % (X(k, 0, 16), ar(A_A + 4 * j, 4), bslot(n), "0" if j == 0 else X(k, 0, 16)))
                    bread(n + PD)
                    if k == last_of_pass[i] and i < 5:
                        a("ds_read_b64_tr_b16 %s, %s offset:%d" % (ar(A_A + 4 * j, 2), vTR, j * 2048))
                        a("ds_read_b64_tr_b16 %s, %s offset:%d" % (ar(A_A + 4 * j + 2, 2), vTR, j * 2048 + 1024))
                    if dma and j % 2 == 0:
                        jj = dma[j // 2]
                        w1tok[i + 1] = self.w1_dma(i + 1, part=[jj], setup=(jj == 0))
                    for _ in range(per[j]):
                        a(body[bi]); bi += 1
                    for _ in range(rper[j]):
                        a(red[ri]); ri += 1
                for t in tail:
                    a(t)
            else:
                for t in Q:
                    a(t)
                for t in red:
                    a(t)
            if 2 <= k <= N + 1:
                kk = k - 2
                for p in range(8):
                    a("v_pk_mul_f32 %s, %s, %s" % (Z(kk, 2 * p, 2), X(kk, 2 * p, 2), Z(kk, 2 * p, 2)))
            if 1 <= k <= N:
                for p in range(8):
                    a("v_pk_add_f32 %s, %s, 1.0" % (Z(k - 1, 2 * p, 2), Z(k - 1, 2 * p, 2)))
            if 2 <= k <= N + 1:
                i2, pt2 = units[kk]
                for p in range(8):
                    if kk == first_of_pass[i2]:
                        a("v_pk_mul_f32 %s, %s, %s" % (vr(SB + 2 * p, 2), Z(kk, 2 * p, 2), Z(kk, 2 * p, 2)))
                    else:
                        a("v_pk_fma_f32 %s, %s, %s, %s" % (vr(SB + 2 * p, 2), Z(kk, 2 * p, 2), Z(kk, 2 * p, 2), vr(SB + 2 * p, 2)))
                u = 35 if pt2 == "E" else 6 * i2 + pt2
                if u < NHA and pt2 != "E":
                    for p in range(8):
                        a("v_cvt_pk_bf16_f32 %s, %s, %s" % (Z(kk, 2 * p), Z(kk, 2 * p), Z(kk, 2 * p + 1)))
                    for p in range(8):
                        a("v_accvgpr_write_b32 %s, %s" % (hreg(u, p, 1), Z(kk, 2 * p)))
                else:
                    for p in range(8):
                        a("v_cvt_pk_bf16_f32 %s, %s, %s" % (hreg(u, p, 1), Z(kk, 2 * p), Z(kk, 2 * p + 1)))
                if pt2 == "E":
                    self.he_store(i2)
            if k < N:
                for p in range(8):
                    a("v_pk_fma_f32 %s, %s, %s, %s" % (Z(k, 2 * p, 2), X(k, 2 * p, 2), X(k, 2 * p, 2), sC0))
                for p in range(8):
                    a("v_pk_mul_f32 %s, %s, %s" % (Z(k, 2 * p, 2), Z(k, 2 * p, 2), X(k, 2 * p, 2)))
        for t in self.reduce_ops(5):
            a(t)


    def poll(self, name, load, check):
        a = self.a
        a("s_mov_b32 s84, 0")
        a("%s_loop:" % name)
        load()
        a.flush(vm=True)
        check()
        a("s_cbranch_scc1 %s_done" % name)
        a("s_add_u32 s84, s84, 1")
        a("s_cmp_lt_u32 s84, 0x4000")
        a("s_cbranch_scc1 %s_loop" % name)
        a("%s_done:" % name)

    def sentinel_check(self, regs, tmp):
        a = self.a
        regs = list(regs)
        a("v_max3_u32 %s, %s, %s, %s" % (tmp, regs[0], regs[1], regs[2]))
        k = 3
        while k < len(regs):
            if k + 1 < len(regs):
                a("v_max3_u32 %s, %s, %s, %s" % (tmp, tmp, regs[k], regs[k + 1]))
                k += 2
            else:
                a("v_max_u32 %s, %s, %s" % (tmp, tmp, regs[k]))
                k += 1
        a("v_cmp_eq_u32 vcc, -1, %s" % tmp)
        a("s_cmp_eq_u64 vcc, 0")

    def w2t_prep_load(self):
        a = self.a
        a("v_lshlrev_b32 v77, 4, v0")
        a("s_mul_i32 s6, s2, 1152")
        a("v_add_u32 v77, s6, v77")
        a("v_mov_b32 v79, 0x%x" % BIG)
        a("v_cmp_gt_u32 vcc, 72, v0")
        a("v_cndmask_b32 v77, v79, v77, vcc")
        a("buffer_load_dwordx4 v[40:43], v77, %s, 0 offen" % SW2)

    def w2t_prep_store(self):
        a = self.a
        a("v_mul_u32_u24 v96, 171, v0")
        a("v_lshrrev_b32 v96, 12, v96")
        a("v_mul_u32_u24 v97, 24, v96")
        a("v_sub_u32 v97, v0, v97")
        a("v_lshrrev_b32 v98, 2, v97")
        a("v_mul_u32_u24 v98, 49152, v98")
        a("v_and_b32 v97, 3, v97")
        a("v_lshl_add_u32 v98, v97, 4, v98")
        a("v_lshl_add_u32 v98, v96, 6, v98")
        a("s_mul_i32 s6, s2, 192")
        a("s_add_u32 s6, s6, 0x%x" % W_W2T)
        a("v_add_u32 v98, s6, v98")
        a("v_mov_b32 v97, 0x%x" % BIG)
        a("v_cmp_gt_u32 vcc, 72, v0")
        a("v_cndmask_b32 v98, v97, v98, vcc")
        a("buffer_store_dwordx4 v[40:43], v98, %s, 0 offen sc1" % SWS)

    def handshake_load(self):
        a = self.a
        a("v_mov_b32 v200, 0")
        a("buffer_load_dword v201, v200, %s, 0 offen sc1" % SDBG)

    def handshake_check(self):
        a = self.a
        a.flush(vm=True, lgkm=True)
        a("v_readfirstlane_b32 s6, v201")
        a("s_cmp_ge_u32 s6, 256")
        a("s_cbranch_scc1 L_hs_done2")

        def chk():
            a("v_readfirstlane_b32 s6, v201")
            a("s_cmp_ge_u32 s6, 256")
        self.poll("L_hs", lambda: a("buffer_load_dword v201, v200, %s, 0 offen sc1" % SDBG), chk)
        a("L_hs_done2:")

    def publish_E_bvec(self):
        a = self.a
        a("v_lshrrev_b32 v202, 3, v0")
        a("v_lshlrev_b32 v202, 10, v202")
        a("v_bfe_u32 v203, v0, 2, 1")
        a("v_lshl_add_u32 v202, v203, 9, v202")
        a("v_and_b32 v203, 3, v0")
        a("v_lshl_add_u32 v202, v203, 4, v202")
        a("v_add_u32 v203, %d, v202" % L_E)
        a("v_cmp_gt_u32 vcc, 96, v0")
        a("v_mov_b32 v204, %d" % L_E)
        a("v_cndmask_b32 v203, v204, v203, vcc")
        a("ds_read_b128 v[208:211], v203")
        a("s_mul_i32 s6, %s, 12288" % sG)
        a("s_lshl_b32 s7, %s, 6" % sJ)
        a("s_add_u32 s6, s6, s7")
        a("s_add_u32 s6, s6, 0x%x" % W_LNE)
        a("v_add_u32 v202, s6, v202")
        a("v_mov_b32 v204, 0x%x" % BIG)
        a("v_cndmask_b32 v202, v204, v202, vcc")
        a("v_lshlrev_b32 v205, 4, v0")
        a("v_add_u32 v205, %d, v205" % L_BV)
        a("v_cmp_gt_u32 vcc, 48, v0")
        a("v_mov_b32 v206, %d" % L_BV)
        a("v_cndmask_b32 v205, v206, v205, vcc")
        a("ds_read_b128 v[212:215], v205")
        a("v_lshlrev_b32 v205, 12, v0")
        a("s_lshl_b32 s6, s2, 4")
        a("s_add_u32 s6, s6, 0x%x" % (W_INBOX + 192 * 4096))
        a("v_add_u32 v205, s6, v205")
        a("v_cndmask_b32 v205, v204, v205, vcc")
        a("buffer_store_dwordx4 v[208:211], v202, %s, 0 offen sc1" % SWS)
        a("buffer_store_dwordx4 v[212:215], v205, %s, 0 offen sc1" % SWS)

    def gather_E(self):
        a = self.a
        a.flush(vm=True, lgkm=True)
        a("s_mul_i32 s6, %s, 12288" % sG)
        a("s_mul_i32 s7, %s, 3072" % sW)
        a("s_add_u32 s6, s6, s7")
        a("s_add_u32 s6, s6, 0x%x" % W_LNE)
        a("s_cmp_lt_u32 %s, 6" % sJ)
        a("s_cselect_b32 s87, s6, 0x%x" % BIG)
        a("v_lshlrev_b32 v200, 4, v1")

        def ld():
            for t in range(3):
                a("buffer_load_dwordx4 %s, v200, %s, s87 offen offset:%d sc1" % (vr(204 + 4 * t, 4), SWS, 1024 * t))
        self.poll("L_ge", ld, lambda: self.sentinel_check([vr(204 + i) for i in range(12)], "v201"))
        a("s_mul_i32 s7, %s, 3072" % sW)
        a("s_add_u32 s7, s7, %d" % L_E)
        a("v_add_u32 v200, s7, v200")
        toks = []
        for t in range(3):
            toks.append(a("ds_write_b128 v200, %s offset:%d" % (vr(204 + 4 * t, 4), 1024 * t), tok=True))
        return toks

    def he_store(self, i):
        a = self.a
        a("s_mul_i32 s6, %s, 49152" % sG)
        a("s_mul_i32 s7, %s, 12288" % sW)
        a("s_add_u32 s6, s6, s7")
        a("s_lshl_b32 s7, %s, 11" % sJ)
        a("s_add_u32 s6, s6, s7")
        a("s_add_u32 s6, s6, 0x%x" % W_HE)
        a("s_cmp_lt_u32 %s, 6" % sJ)
        a("s_cselect_b32 s6, s6, 0x%x" % BIG)
        a("v_lshlrev_b32 %s, 4, v1" % vT)
        for sft in range(2):
            a("buffer_store_dwordx4 %s, %s, %s, s6 offen offset:%d sc1" % (hreg(35, 4 * sft, 4), vT, SWS, 1024 * sft))

    def publish_sums(self):
        a = self.a
        a("v_lshrrev_b32 v8, 3, v1")
        a("v_lshlrev_b32 v8, 6, v8")
        a("v_and_b32 v9, 7, v1")
        a("v_lshl_add_u32 v8, v9, 2, v8")
        a("s_lshr_b32 s6, %s, 1" % sW)
        a("s_mul_i32 s6, s6, 384")
        a("s_and_b32 s7, %s, 1" % sW)
        a("s_lshl_b32 s7, s7, 5")
        a("s_add_u32 s6, s6, s7")
        a("v_add_u32 v8, s6, v8")
        a("v_cmp_gt_u32 vcc, 48, v1")
        a("v_lshlrev_b32 v9, 2, v8")
        a("v_add_u32 v9, %d, v9" % L_SUMS)
        a("v_mov_b32 v10, %d" % L_SUMS)
        a("v_cndmask_b32 v9, v10, v9, vcc")
        a("ds_read_b128 v[12:15], v9")
        a("v_lshlrev_b32 v8, 10, v8")
        a("s_lshl_b32 s6, s2, 4")
        a("s_add_u32 s6, s6, 0x%x" % W_INBOX)
        a("v_add_u32 v8, s6, v8")
        a("v_mov_b32 v10, 0x%x" % BIG)
        a("v_cndmask_b32 v8, v10, v8, vcc")
        a.flush(vm=True)
        a("buffer_store_dwordx4 v[12:15], v8, %s, 0 offen sc1" % SWS)

    def reducer(self):
        a = self.a
        a.flush(vm=True, lgkm=True) if False else None
        a("s_cmp_lg_u32 %s, 0" % sW)
        a("s_cbranch_scc1 L_red_skip")
        a("s_cmp_ge_u32 s2, 240")
        a("s_cbranch_scc1 L_red_skip")
        a("s_lshl_b32 s87, s2, 12")
        a("s_add_u32 s87, s87, 0x%x" % W_INBOX)
        a("v_lshlrev_b32 v8, 4, v1")

        def ld():
            for m in range(4):
                a("buffer_load_dwordx4 %s, v8, %s, s87 offen offset:%d sc1" % (vr(16 + 4 * m, 4), SWS, 1024 * m))
        self.poll("L_red", ld, lambda: self.sentinel_check([vr(16 + i) for i in range(16)], "v9"))
        for c in range(4):
            a("v_add_f32 %s, %s, %s" % (vr(16 + c), vr(16 + c), vr(20 + c)))
        for c in range(4):
            a("v_add_f32 %s, %s, %s" % (vr(24 + c), vr(24 + c), vr(28 + c)))
        for c in range(4):
            a("v_add_f32 %s, %s, %s" % (vr(16 + c), vr(16 + c), vr(24 + c)))
        a("s_nop 1")
        a("v_add_f32_dpp v16, v16, v16 row_ror:8 row_mask:0xf bank_mask:0x3")
        a("v_add_f32_dpp v18, v18, v18 row_ror:8 row_mask:0xf bank_mask:0x3")
        a("v_add_f32_dpp v16, v17, v17 row_ror:8 row_mask:0xf bank_mask:0xc")
        a("v_add_f32_dpp v18, v19, v19 row_ror:8 row_mask:0xf bank_mask:0xc")
        a("v_add_f32_dpp v16, v16, v16 row_shl:4 row_mask:0xf bank_mask:0x5")
        a("v_add_f32_dpp v16, v18, v18 row_shr:4 row_mask:0xf bank_mask:0xa")
        a("v_add_f32_dpp v16, v16, v16 quad_perm:[2,3,0,1] row_mask:0xf bank_mask:0xf")
        a("v_add_f32_dpp v16, v16, v16 quad_perm:[1,0,3,2] row_mask:0xf bank_mask:0xf")
        a("v_mov_b32 v17, v16")
        a("v_permlane16_swap_b32 v16, v17")
        a("v_add_f32 v16, v16, v17")
        a("v_mov_b32 v17, v16")
        a("v_permlane32_swap_b32 v16, v17")
        a("v_add_f32 v16, v16, v17")
        a("v_mov_b32 v18, %s" % fhex(1e-6))
        a("v_fmac_f32 v18, %s, v16" % fhex(1.0 / (ALPHA * ALPHA)))
        a("v_sqrt_f32 v18, v18")
        a("s_cmp_lt_u32 s2, 192")
        a("s_cselect_b32 s6, -1, 0")
        a("s_mov_b32 s7, s6")
        a("v_cndmask_b32 v16, v16, v18, s[6:7]")
        a("v_bfe_u32 v10, v1, 3, 1")
        a("v_bfe_u32 v11, v1, 2, 1")
        a("v_lshl_add_u32 v10, v11, 1, v10")
        a("v_lshlrev_b32 v10, 2, v10")
        a("s_lshl_b32 s6, s2, 4")
        a("s_add_u32 s6, s6, 0x%x" % W_TOT)
        a("v_add_u32 v10, s6, v10")
        a("s_mov_b64 exec, 0x1111")
        a("buffer_store_dword v16, v10, %s, 0 offen sc1" % SWS)
        a("s_mov_b64 exec, -1")
        a.flush(vm=True) if False else None
        a("L_red_skip:")


    def phase2_shadow(self):
        a = self.a
        lane = "v1"
        a("v_lshrrev_b32 v8, 2, %s" % lane)
        a("v_mul_u32_u24 v8, 384, v8")
        a("v_and_b32 v9, 3, %s" % lane)
        a("v_lshl_add_u32 v8, v9, 4, v8")
        a("s_lshr_b32 s6, %s, 1" % sW)
        a("s_mul_i32 s6, s6, 384")
        a("s_and_b32 s7, %s, 1" % sW)
        a("s_lshl_b32 s7, s7, 5")
        a("s_add_u32 s87, s6, s7")
        for i in range(6):
            a("s_lshl_b32 s6, s%d, 6" % (56 + i))
            a("s_add_u32 s%d, s6, s87" % (94 + i))
        a("s_mul_i32 s48, %s, 12288" % sW)
        a("s_lshl_b32 s49, s56, 6")
        toks = []
        for i in range(6):
            for sft in range(2):
                a("s_add_u32 m0, s48, %d" % ((2 * i + sft) * 1024))
                a("s_mul_i32 s6, s%d, 384" % (94 + i))
                a("s_add_u32 s6, s6, s49")
                a("s_add_u32 s6, s6, %d" % (sft * 16 * 384))
                toks.append(a("buffer_load_dwordx4 v8, %s, s6 offen lds" % SW2, tok=True))
        self.raw_tok0 = toks[-1]
        for i in range(6):
            a("s_lshl_b32 s%d, s%d, 6" % (94 + i, 94 + i))
        a("v_and_b32 v9, 31, %s" % lane)
        a("s_mov_b32 s54, 0")
        a("s_mov_b32 s55, -1")
        for u in range(3):
            a("v_mov_b32 v10, s%d" % (94 + 2 * u))
            a("v_mov_b32 v11, s%d" % (94 + 2 * u + 1))
            a("v_cndmask_b32 v10, v10, v11, s[54:55]")
            a("v_lshrrev_b32 v10, 6, v10")
            a("v_add_u32 %s, v10, v9" % vr(16 + u))
            a("v_lshlrev_b32 v10, 1, %s" % vr(16 + u))
            a("buffer_load_ushort %s, v10, %s, 0 offen" % (vr(20 + u), SGG))
            a("v_lshlrev_b32 %s, 2, %s" % (vr(16 + u), vr(16 + u)))
            a("v_add_u32 %s, %d, %s" % (vr(16 + u), L_TOT, vr(16 + u)))
        a("v_and_b32 v10, 7, %s" % lane)
        a("v_and_b32 v11, 1, v10")
        a("v_lshlrev_b32 v11, 4, v11")
        a("v_mov_b32 v12, 1")
        a("v_lshlrev_b32 v11, v11, v12")
        a("v_lshrrev_b32 v10, 1, v10")
        for t in range(4):
            a("v_cmp_eq_u32 vcc, %d, v10" % t)
            a("v_cndmask_b32 %s, 0, v11, vcc" % vr(24 + t))
        a("s_mul_i32 s6, %s, 3328" % sW)
        a("s_add_u32 s49, s6, %d" % L_DIAG)
        a("v_lshrrev_b32 v10, 5, %s" % lane)
        a("v_mul_u32_u24 v10, 544, v10")
        a("v_bfe_u32 v11, %s, 4, 1" % lane)
        a("v_mul_u32_u24 v11, 272, v11")
        a("v_and_b32 v12, 15, %s" % lane)
        a("v_lshl_add_u32 v10, v12, 4, v10")
        a("v_add3_u32 v10, v10, v11, s49")
        for u in range(3):
            a("v_add_u32 %s, %d, v10" % (vr(28 + u), u * 1088))
        for t in range(4):
            a("v_mov_b32 %s, 0" % vr(32 + t))
        a("v_mul_u32_u24 v10, 272, %s" % lane)
        a("v_add_u32 v10, 256, v10")
        a("v_add_u32 v10, s49, v10")
        a("s_mov_b64 exec, 0xfff")
        a("ds_write_b128 v10, v[32:35]")
        a("s_mov_b64 exec, -1")
        a("v_lshlrev_b32 v10, 4, %s" % lane)
        a("v_add_u32 v10, %d, v10" % L_ZERO)
        a("ds_write_b128 v10, v[32:35]")
        a("v_and_b32 v10, 31, %s" % lane)
        a("v_lshrrev_b32 v11, 5, %s" % lane)
        a("v_bfe_u32 v12, %s, 3, 1" % lane)
        a("v_cmp_eq_u32 s[54:55], v11, v12")
        a("v_bfe_u32 v13, %s, 4, 1" % lane)
        a("v_and_b32 v14, 15, %s" % lane)
        a("v_lshlrev_b32 v14, 4, v14")
        a("v_mov_b32 v15, 256")
        a("v_cndmask_b32 v14, v15, v14, s[54:55]")
        a("v_cmp_eq_u32 vcc, 0, v13")
        a("v_cndmask_b32 v36, v15, v14, vcc")
        a("v_cndmask_b32 v37, v14, v15, vcc")
        a("v_add_u32 v3, s49, v36")
        a("s_add_u32 s6, s49, 272")
        a("v_add_u32 v4, s6, v37")
        a("v_lshrrev_b32 v10, 5, %s" % lane)
        a("v_bfe_u32 v11, %s, 2, 2" % lane)
        a("v_lshl_add_u32 v10, v10, 3, v11")
        a("v_lshlrev_b32 v10, 6, v10")
        a("v_bfe_u32 v11, %s, 4, 1" % lane)
        a("v_lshl_add_u32 v10, v11, 5, v10")
        a("v_and_b32 v11, 3, %s" % lane)
        a("v_lshl_add_u32 v10, v11, 3, v10")
        a("v_add_u32 v2, s48, v10")
        a("v_lshrrev_b32 v10, 5, %s" % lane)
        a("v_lshlrev_b32 v10, 4, v10")
        a("s_cmp_eq_u32 %s, 0" % sW)
        a("s_mov_b32 s6, %d" % (L_TOT + 192 * 16))
        a("s_cselect_b32 s6, s6, %d" % L_ZERO)
        a("v_add_u32 v5, s6, v10")
        a("v_and_b32 v10, 31, %s" % lane)
        a("v_lshrrev_b32 v11, 5, %s" % lane)
        a("v_lshlrev_b32 v11, 2, v11")
        a("v_and_b32 v12, 7, v10")
        a("v_xor_b32 v11, v11, v12")
        a("v_lshlrev_b32 v11, 4, v11")
        a("v_lshl_add_u32 v11, v10, 7, v11")
        a("s_lshl_b32 s6, %s, 13" % sW)
        a("s_add_u32 s6, s6, %d" % L_PART)
        a("v_add_u32 v11, s6, v11")
        for g in range(4):
            a("v_xor_b32 %s, %d, v11" % (vr(248 + g), g * 16))
        a("v_lshrrev_b32 v10, 2, %s" % lane)
        a("s_and_b32 s6, %s, 1" % sW)
        a("s_lshl_b32 s6, s6, 4")
        a("v_add_u32 v10, s6, v10")
        a("v_and_b32 v11, 3, %s" % lane)
        a("v_and_b32 v12, 7, v10")
        a("v_xor_b32 v11, v11, v12")
        a("v_lshlrev_b32 v11, 4, v11")
        a("v_lshl_add_u32 v11, v10, 7, v11")
        a("s_lshr_b32 s6, %s, 1" % sW)
        a("s_lshl_b32 s6, s6, 12")
        a("s_add_u32 s6, s6, %d" % L_PART)
        a("v_add_u32 v252, s6, v11")
        a("v_xor_b32 v253, 64, v252")
        for pp in range(3):
            a("v_lshrrev_b32 v10, 2, %s" % lane)
            a("s_lshl_b32 s6, %s, 4" % sW)
            a("s_add_u32 s6, s6, %d" % (64 * pp))
            a("v_add_u32 v10, s6, v10")
            a("v_mul_u32_u24 v11, 4682, v10")
            a("v_lshrrev_b32 v11, 16, v11")
            a("v_mul_u32_u24 v12, 14, v11")
            a("v_sub_u32 v12, v10, v12")
            a("v_add_u32 v11, %s, v11" % sY0)
            a("v_mul_u32_u24 v11, 224, v11")
            a("v_add3_u32 v11, v11, v12, %s" % sX0)
            a("v_mul_u32_u24 v11, 384, v11")
            a("v_and_b32 v12, 3, %s" % lane)
            a("v_lshl_add_u32 %s, v12, 4, v11" % vr(244 + pp))
        a("v_lshlrev_b32 v6, 4, %s" % lane)

    def wait_totals(self):
        a = self.a
        a.flush(vm=True, lgkm=True)
        a("v_lshlrev_b32 v10, 4, v1")
        a("s_mul_i32 s6, %s, 960" % sW)
        a("s_add_u32 s7, s6, 0x%x" % W_TOT)
        a("v_add_u32 v11, s7, v10")
        a("v_mov_b32 v12, 0x%x" % BIG)
        a("v_cmp_gt_u32 vcc, 60, v1")
        a("v_cndmask_b32 v11, v12, v11, vcc")
        a("s_add_u32 s7, s6, %d" % L_TOT)
        a("v_add_u32 v10, s7, v10")
        self.poll("L_tot", lambda: a("buffer_load_dwordx4 v[40:43], v11, %s, 0 offen sc1" % SWS),
                  lambda: self.sentinel_check([vr(40 + i) for i in range(4)], "v12"))
        a("s_mov_b32 s6, -1")
        a("s_mov_b32 s7, 0x0fffffff")
        a("s_mov_b64 exec, s[6:7]")
        a("ds_write_b128 v10, v[40:43]")
        a("s_mov_b64 exec, -1")
        a.flush(lgkm=True)
        a("s_barrier")

    def scale_table(self):
        a = self.a
        a("v_lshlrev_b32 v10, 4, v1")
        a("v_add_u32 v10, %d, v10" % L_TOT)
        for m in range(3):
            a("ds_read_b128 %s, v10 offset:%d" % (vr(40 + 4 * m, 4), 1024 * m))
        for u in range(3):
            a("ds_read_b32 %s, %s" % (vr(56 + u), vr(16 + u)))
        for u in range(3):
            a("v_lshlrev_b32 %s, 16, %s" % (vr(20 + u), vr(20 + u)))
        for t in range(4):
            a("v_add_f32 %s, %s, %s" % (vr(40 + t), vr(40 + t), vr(44 + t)))
        for t in range(4):
            a("v_add_f32 %s, %s, %s" % (vr(40 + t), vr(40 + t), vr(48 + t)))
        a("v_add_f32 v40, v40, v41")
        a("v_add_f32 v42, v42, v43")
        a("v_add_f32 v40, v40, v42")
        a("v_add_f32_dpp v40, v40, v40 row_ror:8 row_mask:0xf bank_mask:0xf")
        a("v_add_f32_dpp v40, v40, v40 row_ror:4 row_mask:0xf bank_mask:0xf")
        a("v_add_f32_dpp v40, v40, v40 quad_perm:[2,3,0,1] row_mask:0xf bank_mask:0xf")
        a("v_add_f32_dpp v40, v40, v40 quad_perm:[1,0,3,2] row_mask:0xf bank_mask:0xf")
        a("v_mov_b32 v41, v40")
        a("v_permlane16_swap_b32 v40, v41")
        a("v_add_f32 v40, v40, v41")
        a("v_mov_b32 v41, v40")
        a("v_permlane32_swap_b32 v40, v41")
        a("v_add_f32 v40, v40, v41")
        a("v_mov_b32 v41, %s" % fhex(1e-6))
        a("v_fmac_f32 v41, %s, v40" % fhex(1.0 / 768))
        a("v_rcp_f32 v41, v41")
        for u in range(3):
            a("v_mul_f32 %s, %s, %s" % (vr(56 + u), vr(56 + u), vr(20 + u)))
        for u in range(3):
            a("v_fma_f32 %s, %s, v41, 1.0" % (vr(56 + u), vr(56 + u)))
        for u in range(3):
            a("v_mul_f32 %s, %s, %s" % (vr(56 + u), fhex(1.0 / ALPHA), vr(56 + u)))
        for u in range(3):
            a("v_cvt_pk_bf16_f32 %s, %s, %s" % (vr(56 + u), vr(56 + u), vr(56 + u)))
        for u in range(3):
            a("v_and_b32 %s, 0xffff, %s" % (vr(56 + u), vr(56 + u)))
        for u in range(3):
            for t in range(4):
                a("v_mul_u32_u24 %s, %s, %s" % (vr(60 + 4 * u + t), vr(56 + u), vr(24 + t)))
            a("ds_write_b128 %s, %s" % (vr(28 + u), vr(60 + 4 * u, 4)))

    def phase2(self):
        a = self.a
        o = self.o
        AP, DS, T0, T1, XR = 8, 56, 88, 96, 240
        ACC2, BVC, RAWB, DIAG = 152, 184, 200, 216
        vPW = [vr(248 + g) for g in range(4)]
        vPR = ["v252", "v253"]
        vO = [vr(244 + pp) for pp in range(3)]
        units = [(q, pt) for q in range(6) for pt in range(6)]
        if o.useE:
            units.append((5, "E"))
        NU = len(units)
        acc = lambda U, off=0, n=16: ar(ACC2 + 16 * (U & 1) + off, n)
        stmod = {0: "", 1: " sc1", 2: " nt", 3: " sc0 sc1"}[o.stmode]

        def block_reads(b):
            L = []
            sl = b & 1
            for m in range(2):
                L.append("ds_read_b64_tr_b16 %s, v2 offset:%d" % (ar(RAWB + 8 * sl + 4 * m, 2), (2 * b + m) * 1024))
                L.append("ds_read_b64_tr_b16 %s, v2 offset:%d" % (ar(RAWB + 8 * sl + 4 * m + 2, 2), (2 * b + m) * 1024 + 256))
            L.append("ds_read_b128 %s, v3 offset:%d" % (ar(DIAG + 8 * sl, 4), b * 544))
            L.append("ds_read_b128 %s, v4 offset:%d" % (ar(DIAG + 8 * sl + 4, 4), b * 544))
            return L

        def diag_mfma(b, m):
            sl = b & 1
            d = vr(DS + 16 * sl, 16)
            return "v_mfma_f32_32x32x16_bf16 %s, %s, %s, %s" % (d, ar(DIAG + 8 * sl + 4 * m, 4), ar(RAWB + 8 * sl + 4 * m, 4), "0" if m == 0 else d)

        def cvts(b):
            sl = b & 1
            return ["v_cvt_pk_bf16_f32 %s, %s, %s" % (vr(AP + 8 * b + p), vr(DS + 16 * sl + 2 * p), vr(DS + 16 * sl + 2 * p + 1)) for p in range(8)]

        def bias_reads(q):
            L = ["s_lshl_b32 s6, s%d, 7" % (56 + q), "v_add_u32 %s, s6, v5" % vT]
            for g in range(4):
                L.append("ds_read_b128 %s, %s offset:%d" % (ar(BVC + 4 * g, 4), vT, g * 32))
            return L

        def raw_dma(q):
            G = []
            for n in range(12):
                i, sft = divmod(n, 2)
                g = []
                if n == 0:
                    g += ["s_mul_i32 s49, s%d, 49152" % (56 + q), "s_add_u32 s49, s49, 0x%x" % W_W2T]
                g += ["s_add_u32 m0, s48, %d" % (n * 1024), "s_add_u32 s6, s49, s%d" % (94 + i)]
                if sft:
                    g.append("s_add_u32 s6, s6, 1024")
                g.append(("buffer_load_dwordx4 v6, %s, s6 offen lds" % SWS, "raw%d" % q))
                G.append(g)
            return G

        rawtok = {0: self.raw_tok0}
        toks = {}

        def emit(it):
            if isinstance(it, tuple):
                t = a(it[0], tok=True)
                toks[it[1]] = t
            else:
                a(it)

        def step_of(U): return U >> 1

        def xload(S):
            if S < 18:
                q, pp = divmod(S, 3)
                return ["s_lshl_b32 s87, s%d, 6" % (56 + q),
                        "buffer_load_dwordx4 %s, %s, %s, s87 offen" % (vr(XR, 4), vO[pp], SX)]
            return ["s_lshl_b32 s87, s61, 6", "buffer_load_dwordx4 %s, v247, %s, s87 offen" % (vr(XR, 4), SX)]

        def finalize(S):
            par = (S & 1) * 32768
            isE = S == 18
            pr = self.vPRE if isE else vPR
            rd = lambda T, src: ["ds_read_b128 %s, %s offset:%d" % (vr(T + 4 * h, 4), pr[h], par + src * 8192) for h in range(2)]
            add = lambda: ["v_add_f32 %s, %s, %s" % (vr(T0 + r), vr(T0 + r), vr(T1 + r)) for r in range(8)]
            P = []

            def put(slot, kind, L, per=4):
                for k2, x in enumerate(L):
                    P.append((slot + (k2 // per if kind == "fill" else 0), kind, x))
            put(0, "after", rd(T0, 0) + rd(T1, 1))
            put(2, "fill", add())
            put(4, "after", rd(T1, 2))
            put(6, "fill", add())
            put(8, "after", rd(T1, 3))
            put(10, "fill", add())
            un = []
            for d in range(4):
                un.append("v_lshlrev_b32 %s, 16, %s" % (vr(T1 + 2 * d), vr(XR + d)))
                un.append("v_and_b32 %s, 0xffff0000, %s" % (vr(T1 + 2 * d + 1), vr(XR + d)))
            put(12, "fill", un)
            put(14, "fill", add())
            put(16, "fill", ["v_cvt_pk_bf16_f32 %s, %s, %s" % (vr(T0 + d), vr(T0 + 2 * d), vr(T0 + 2 * d + 1)) for d in range(4)])
            if not isE:
                q, pp = divmod(S, 3)
                put(17, "after", ["s_lshl_b32 s6, s%d, 6" % (56 + q),
                                  "buffer_store_dwordx4 %s, %s, %s, s6 offen%s" % (vr(T0, 4), vO[pp], SOUT, stmod)])
            else:
                put(17, "after", ["s_lshl_b32 s6, s61, 6",
                                  "buffer_store_dwordx4 %s, v247, %s, s6 offen%s" % (vr(T0, 4), SOUT, stmod)])
            if S + 1 <= (18 if o.useE else 17):
                put(14, "after", xload(S + 1))
            return P

        def pwrites(U):
            S = step_of(U)
            off = (S & 1) * 32768 + (U & 1) * 4096
            return [("ds_write_b128 %s, %s offset:%d" % (vPW[g], acc(U, 4 * g, 4), off), "pw") for g in range(4)]

        a.need(toks=[rawtok[0]])
        for it in bias_reads(0):
            a(it)
        for it in block_reads(0) + block_reads(1):
            a(it)
        for b in range(6):
            a(diag_mfma(b, 0))
            a(diag_mfma(b, 1))
            if b + 2 < 6:
                for it in block_reads(b + 2):
                    a(it)
            if b > 0:
                for it in cvts(b - 1):
                    a(it)
        for it in cvts(5):
            a(it)
        for it in xload(0):
            a(it)
        self.stamp(14)

        carry = []
        for U in range(NU):
            q, pt = units[U]
            S = step_of(U)
            boundary = (pt == 5 and q < 5)
            hu = (lambda i: 6 * i + (0 if pt == "E" else pt))
            slots = []
            for kk in range(12):
                i, sft = divmod(kk, 2)
                c = ar(BVC, 16) if kk == 0 else acc(U)
                slots.append("v_mfma_f32_32x32x16_bf16 %s, %s, %s, %s" % (acc(U), vr(AP + 4 * kk, 4), hreg(hu(i), 4 * sft, 4), c))
            if boundary:
                ns = []
                for b in range(6):
                    ns += [slots[2 * b], slots[2 * b + 1], diag_mfma(b, 0), diag_mfma(b, 1)]
                slots = ns
            nsl = len(slots)
            plan = list(carry)
            carry = []
            if U > 0:
                for g, it in enumerate(pwrites(U - 1)):
                    plan.append((3 + g, "after", it))
            if (U & 1) and S >= 1:
                for (sl, kind, x) in finalize(S - 1):
                    if nsl == 24 and sl < 12:
                        sl = 2 * sl
                    elif nsl == 24:
                        sl = sl + 12
                    plan.append((sl, kind, x))
            if boundary:
                for b in range(6):
                    if b + 2 < 6:
                        for x in block_reads(b + 2):
                            plan.append((4 * b + 3, "after", x))
                    if b > 0:
                        for k2, x in enumerate(cvts(b - 1)):
                            plan.append((4 * b + 2 + k2 // 2, "fill", x))
                for k2, x in enumerate(cvts(5)):
                    plan.append((nsl + 2 + k2 // 4, "fill", x))
                for x in bias_reads(q + 1):
                    plan.append((2, "after", x))
            if pt == 4 and q < 5:
                plan.append((6, "after", ("need_raw", q + 1)))
                for x in block_reads(0):
                    plan.append((7, "after", x))
                for x in block_reads(1):
                    plan.append((9, "after", x))
            if pt in (1, 2) and q < 5:
                for k2, g in enumerate(raw_dma(q + 1)[6 * (pt - 1):6 * pt]):
                    for x in g:
                        plan.append((2 * k2, "after", x))
            if o.useE and q == 5 and pt in (1, 2):
                for k2, g in enumerate(self.he_loads()[6 * (pt - 1):6 * pt]):
                    for x in g:
                        plan.append((2 * k2, "after", x))
            if o.useE and q == 5 and pt == 3:
                for k2, x in enumerate(self.e_addresses()):
                    plan.append((k2 // 4, "fill", x))
            after = [[] for _ in range(nsl)]
            fill = [[] for _ in range(nsl)]
            for (sl, kind, x) in plan:
                if sl >= nsl:
                    carry.append((sl - nsl, kind, x))
                elif kind == "after":
                    after[sl].append(x)
                else:
                    fill[sl].append(x)
            for n in range(nsl):
                if n == 9 and (U & 1) == 0 and U > 0:
                    a.need(toks=[toks["pw"]])
                    a("s_barrier")
                a(slots[n])
                for it in after[n]:
                    if isinstance(it, tuple) and it[0] == "need_raw":
                        a.need(toks=[toks["raw%d" % it[1]]])
                    else:
                        emit(it)
                for x in fill[n]:
                    a(x)
            if pt == 5 and q in (0, 2):
                self.stamp(15 + q // 2)
        def run_plan(P):
            P = sorted(enumerate(P), key=lambda e: (e[1][0], 0 if e[1][1] == "after" else 1, e[0]))
            for _, (sl, kind, x) in P:
                emit(x)
        run_plan(carry)
        for it in pwrites(NU - 1):
            emit(it)
        a.need(toks=[toks["pw"]])
        a("s_barrier")
        run_plan(finalize(17))
        if o.useE:
            run_plan(finalize(18))

    def he_loads(self):
        G = []
        for n in range(12):
            i, sft = divmod(n, 2)
            g = []
            if n == 0:
                g += ["s_mul_i32 s49, %s, 49152" % sG, "s_mul_i32 s6, %s, 12288" % sW, "s_add_u32 s49, s49, s6",
                      "s_add_u32 s49, s49, 0x%x" % W_HE, "s_cmp_lt_u32 %s, 6" % sJ, "s_cselect_b32 s49, s49, 0x%x" % BIG]
            g += ["s_lshl_b32 s6, s%d, 11" % (56 + i), "s_add_u32 s6, s6, s49"]
            g.append("buffer_load_dwordx4 %s, v6, %s, s6 offen offset:%d sc1" % (hreg(6 * i, 4 * sft, 4), SWS, 1024 * sft))
            G.append(g)
        return G

    def e_addresses(self):
        self.vPRE = ["v56", "v57"]
        L = []
        L += ["v_lshrrev_b32 v58, 2, v6"] if False else []
        L += ["v_lshrrev_b32 v58, 4, v6",
              "v_lshrrev_b32 v59, 2, v58",
              "v_and_b32 v59, 7, v59",
              "s_lshl_b32 s6, %s, 3" % sW,
              "v_add_u32 v59, s6, v59",
              "v_and_b32 v60, 3, v58",
              "v_and_b32 v61, 7, v59",
              "v_xor_b32 v61, v60, v61",
              "v_lshlrev_b32 v61, 4, v61",
              "v_lshl_add_u32 v61, v59, 7, v61",
              "v_add_u32 v56, %d, v61" % L_PART,
              "v_xor_b32 v57, 64, v56",
              "v_lshrrev_b32 v61, 2, v59",
              "s_lshl_b32 s6, %s, 3" % sG,
              "v_add_u32 v61, s6, v61",
              "v_lshrrev_b32 v62, 4, v61",
              "v_and_b32 v61, 15, v61",
              "v_mul_u32_u24 v62, 14, v62",
              "v_add_u32 v62, 13, v62",
              "v_mul_u32_u24 v62, 224, v62",
              "v_mul_u32_u24 v61, 14, v61",
              "v_and_b32 v63, 3, v59",
              "v_add3_u32 v61, v61, v63, 10",
              "v_add_u32 v62, v62, v61",
              "v_mul_u32_u24 v62, 384, v62",
              "v_lshl_add_u32 v62, v60, 4, v62",
              "v_mov_b32 v63, 0x%x" % BIG,
              "v_cmp_gt_u32 vcc, 32, v58",
              "v_cndmask_b32 v62, v63, v62, vcc",
              "s_cmp_lt_u32 %s, 6" % sJ,
              "s_cselect_b32 s6, 0, 0x%x" % BIG,
              "v_add_u32 v247, s6, v62"]
        return L

    def dump_h(self):
        a = self.a
        a.flush(vm=True, lgkm=True)
        a("v_lshlrev_b32 v240, 4, v1")
        a("s_mul_i32 s6, s2, 0x%x" % self.o.dump_stride2)
        a("s_mul_i32 s7, %s, %d" % (sW, 36 * 2048))
        a("s_add_u32 s6, s6, s7")
        a("s_add_u32 s6, s6, 0x%x" % W_DUMP2)
        for u in range(36):
            for sft in range(2):
                a("buffer_store_dwordx4 %s, v240, %s, s6 offen" % (hreg(u, 4 * sft, 4), SWS))
                a("s_add_u32 s6, s6, 1024")
            a.flush(vm=True)

    def dump_lds(self, lds_off, nbytes, ws_off):
        a = self.a
        a.flush(vm=True, lgkm=True)
        a("s_barrier")
        a("v_lshlrev_b32 v240, 4, v0")
        a("s_mul_i32 s6, s2, 0x%x" % self.o.dump_stride)
        a("s_add_u32 s6, s6, 0x%x" % (W_DUMP + ws_off))
        for k in range(0, nbytes, 4096):
            a("v_add_u32 v241, %d, v240" % (lds_off + k))
            a("ds_read_b128 v[244:247], v241")
            a("v_add_u32 v242, %d, v240" % k)
            a("buffer_store_dwordx4 v[244:247], v242, %s, s6 offen" % SWS)
            a.flush(vm=True, lgkm=True)

    def finish_kernel(self):
        a = self.a
        self.write_stamps()
        a.flush(vm=True, lgkm=True)
        a("L_end:")
        a("s_endpgm")

    def build(self):
        o = self.o
        self.entry()
        self.phase0()
        if o.stage == 0:
            self.dump_lds(0, LDS_SIZE, 0)
            self.finish_kernel()
            return
        self.stamp(6)
        self.phase1_setup()
        self.phase1()
        self.stamp(10)
        if o.stage == 1:
            self.dump_h()
            self.dump_lds(L_SUMS, 4096, 0)
            self.finish_kernel()
            return
        self.publish_sums()
        self.stamp(11)
        self.reducer()
        self.phase2_shadow()
        self.stamp(12)
        self.wait_totals()
        self.stamp(13)
        self.scale_table()
        self.phase2()
        self.stamp(17)
        self.finish_kernel()

    def text(self):
        a = self.a
        ws = a.insert_waits()
        nn, notes = a.insert_nops()
        sys.stderr.write("waits %s nops %d %s counts %s\n" % (ws, nn, notes, a.count()))
        hdr = open(os.path.join(os.path.dirname(os.path.abspath(__file__)), "header.txt")).read()
        hdr = hdr.replace("@LAUNCH@", "; @launch grid=(256,1,1) block=(256,1,1) lds=%d" % LDS_SIZE)
        body = a.text()
        tail = """.section .rodata,"a"
.p2align 6
.amdhsa_kernel %s
  .amdhsa_next_free_vgpr 512
  .amdhsa_next_free_sgpr 102
  .amdhsa_accum_offset 256
  .amdhsa_group_segment_fixed_size 0
  .amdhsa_kernarg_size 72
  .amdhsa_user_sgpr_count 2
  .amdhsa_user_sgpr_kernarg_segment_ptr 1
  .amdhsa_system_sgpr_workgroup_id_x 1
  .amdhsa_float_denorm_mode_32 3
.end_amdhsa_kernel
""" % KNAME
        return hdr + ".amdgcn_target \"amdgcn-amd-amdhsa--gfx950\"\n.text\n.globl %s\n.p2align 8\n.type %s,@function\n%s:\n" % (KNAME, KNAME, KNAME) + body + tail


def main():
    ap = argparse.ArgumentParser()
    ap.add_argument("-o", default="k.s")
    ap.add_argument("--stage", type=int, default=99)
    ap.add_argument("--stamps", action="store_true")
    ap.add_argument("--prefetch", type=int, default=0)
    ap.add_argument("--useE", type=int, default=0)
    ap.add_argument("--xnt", type=int, default=1)
    ap.add_argument("--stmode", type=int, default=1)
    ap.add_argument("--dump_stride2", type=lambda x: int(x, 0), default=0x48000)
    ap.add_argument("--dump_stride", type=lambda x: int(x, 0), default=0x40000)
    o = ap.parse_args()
    g = Gen(o)
    g.build()
    open(o.o, "w").write(g.text())


if __name__ == "__main__":
    main()
```
